```python
import torch

def _softmax(x, axis=-1):
    return torch.softmax(x, dim=axis)
def _gelu(x):
    return torch.nn.functional.gelu(x, approximate="tanh")
def _silu(x):
    return torch.nn.functional.silu(x)
def _sigmoid(x):
    return torch.sigmoid(x)
def _layernorm(x, axis=-1, eps=1e-5):
    m = x.mean(dim=axis, keepdim=True)
    v = x.var(dim=axis, keepdim=True, unbiased=False)
    return (x - m) / torch.sqrt(v + eps)
def _scatter_add(tgt, idx, src, axis=0):
    return tgt.clone().index_add_(axis, idx, src)
def _segment_sum(src, seg, n):
    out = torch.zeros((n,) + src.shape[1:], dtype=src.dtype)
    return out.index_add_(0, seg, src)
def _pad(x, pw):
    flat = tuple(v for pair in reversed(pw) for v in pair)
    return torch.nn.functional.pad(x, flat)

kernel_name = 'parallel_sum__gqa_block_cached__glu_gated_bilinear__decode'

def setup_inputs():

    _w = (lambda a: (lambda t: t.to(torch.bfloat16) if t.is_floating_point() else t)(torch.as_tensor(a)))
    def _A_setup():
        B, Sq, D = 8, 1, 1024
        Hq, Hkv, Sk, Dh = 32, 4, 4096, 128
        assert Hq % Hkv == 0, (Hq, Hkv)
        return {
            "x": _w((lambda *s: torch.randn(*s, dtype=torch.bfloat16) * 0.05)(B, Sq, D)),
            "k_cache": _w((lambda *s: torch.randn(*s, dtype=torch.bfloat16) * 1.6)(B, Hkv, Sk, Dh)),
            "v_cache": _w((lambda *s: torch.randn(*s, dtype=torch.bfloat16) * 0.8)(B, Hkv, Sk, Dh)),
            "wq": _w((lambda *s: torch.randn(*s, dtype=torch.bfloat16) * 1.6)(D, Hq * Dh) * (D ** -0.5)),
            "wo": _w((lambda *s: torch.randn(*s, dtype=torch.bfloat16) * 0.8)(Hq * Dh, D) * ((Hq * Dh) ** -0.5)),
        }
    _A_in = _A_setup()

    def _B_setup():
        B, S, D, F = 8, 1, 1024, 3584
        return {
            "x": _w((lambda *s: torch.randn(*s, dtype=torch.bfloat16) * 0.05)(B, S, D)),
            "w_gate": _w((lambda *s: torch.randn(*s, dtype=torch.bfloat16) * 0.4)(D, F) * (D ** -0.5)),
            "w_up": _w((lambda *s: torch.randn(*s, dtype=torch.bfloat16) * 0.4)(D, F) * (D ** -0.5)),
            "w_down": _w((lambda *s: torch.randn(*s, dtype=torch.bfloat16) * 0.4)(F, D) * (F ** -0.5)),
        }
    _B_in = _B_setup()

    return {
        "A_x": _A_in["x"],
        "A_k_cache": _A_in["k_cache"],
        "A_v_cache": _A_in["v_cache"],
        "A_wq": _A_in["wq"],
        "A_wo": _A_in["wo"],
        "B_x": _B_in["x"],
        "B_w_gate": _B_in["w_gate"],
        "B_w_up": _B_in["w_up"],
        "B_w_down": _B_in["w_down"],
    }

def reference(A_x, A_k_cache, A_v_cache, A_wq, A_wo, B_x, B_w_gate, B_w_up, B_w_down):
    def _A_ref(x, k_cache, v_cache, wq, wo):
        B, Sq, D = x.shape
        Hq, Dh = 32, 128
        Hkv = k_cache.shape[1]
        rep = Hq // Hkv
        q = (lambda x, *d: x.permute(*d))((x @ wq).reshape(B, Sq, Hq, Dh), 0, 2, 1, 3)
        k = (lambda x, n, axis: torch.repeat_interleave(x, n, dim=axis))(k_cache, rep, axis=1)
        v = (lambda x, n, axis: torch.repeat_interleave(x, n, dim=axis))(v_cache, rep, axis=1)
        scores = torch.einsum("bhqd,bhkd->bhqk", q, k) * (Dh ** -0.5)
        p = _softmax(scores, axis=-1)
        o = torch.einsum("bhqk,bhkd->bhqd", p, v)
        return (lambda x, *d: x.permute(*d))(o, 0, 2, 1, 3).reshape(B, Sq, Hq * Dh) @ wo

    def _B_ref(x, w_gate, w_up, w_down):
        g = torch.einsum("bsd,df->bsf", x, w_gate)
        u = torch.einsum("bsd,df->bsf", x, w_up)
        h = g * u
        return torch.einsum("bsf,fd->bsd", h, w_down)

    x = A_x
    xn = _layernorm(x, axis=-1)
    return x + _A_ref(xn, A_k_cache, A_v_cache, A_wq, A_wo) + _B_ref(xn, B_w_gate, B_w_up, B_w_down)
```

```python
class Asm:
    def __init__(self):
        self.lines = []
        self._lab = 0
    def __call__(self, s=""):
        for l in s.split("\n"):
            self.lines.append(l)
    def e(self, fmt, *a):
        self.lines.append("    " + (fmt % a if a else fmt))
    def label(self, name):
        self.lines.append(name + ":")
    def newlabel(self, base="L"):
        self._lab += 1
        return "%s_%d" % (base, self._lab)
    def text(self):
        return "\n".join(self.lines) + "\n"

def kernel_header(a, name):
    a(".text")
    a(".globl %s" % name)
    a(".p2align 8")
    a(".type %s,@function" % name)
    a("%s:" % name)

def kernel_desc(a, name, vgpr, sgpr=102, accum=None, kernarg=96, extra=()):
    if accum is None:
        accum = min(256, (vgpr + 3) // 4 * 4)
    a('.section .rodata,"a"')
    a(".p2align 6")
    a(".amdhsa_kernel %s" % name)
    a("  .amdhsa_next_free_vgpr %d" % vgpr)
    a("  .amdhsa_next_free_sgpr %d" % sgpr)
    a("  .amdhsa_accum_offset %d" % accum)
    a("  .amdhsa_group_segment_fixed_size 0")
    a("  .amdhsa_kernarg_size %d" % kernarg)
    a("  .amdhsa_user_sgpr_count 2")
    a("  .amdhsa_user_sgpr_kernarg_segment_ptr 1")
    a("  .amdhsa_system_sgpr_workgroup_id_x 1")
    for x in extra:
        a("  " + x)
    a(".end_amdhsa_kernel")

def srd(a, d, base, nbytes):
    a.e("s_mov_b32 s%d, s%d", d, base)
    a.e("s_and_b32 s%d, s%d, 0xffff", d + 1, base + 1)
    a.e("s_mov_b32 s%d, 0x%x", d + 2, nbytes)
    a.e("s_mov_b32 s%d, 0x20000", d + 3)
```

```python
import re
REG = re.compile(r"^(-?)(?:abs\()?([vas])(?:(\d+)|\[(\d+):(\d+)\])\)?$")
TRANS = ("v_exp_f32", "v_log_f32", "v_rcp_f32", "v_rsq_f32", "v_sqrt_f32", "v_sin_f32", "v_cos_f32")
def regs(tok):
    tok = tok.strip()
    if tok in ("vcc",): return {("s", 106), ("s", 107)}
    if tok in ("exec",): return {("s", 126), ("s", 127)}
    if tok == "m0": return {("s", 124)}
    m = REG.match(tok)
    if not m: return set()
    k = m.group(2)
    if m.group(3) is not None: return {(k, int(m.group(3)))}
    return {(k, i) for i in range(int(m.group(4)), int(m.group(5)) + 1)}
def parse(line):
    s = line.split(";")[0].strip()
    if not s or s.endswith(":") or s.startswith("."): return None
    parts = s.split(None, 1)
    op = parts[0]
    rest = parts[1] if len(parts) > 1 else ""
    toks = []
    for t in rest.split(","):
        t = t.strip()
        if not t: continue
        toks.append(t.split()[0])
    R = [regs(t) for t in toks]
    d = dict(op=op, w=set(), r=set(), cls="other", srcC=set(), data=set())
    U = lambda xs: set().union(*xs) if xs else set()
    if op.startswith("v_mfma"):
        d.update(cls="mfma", w=R[0], r=U(R[1:]), srcC=R[3], srcAB=R[1] | R[2])
        d["passes"] = 8 if "32x32" in op else 4
    elif op.startswith("v_permlane") and "swap" in op:
        d.update(cls="valu", w=R[0] | R[1], r=R[0] | R[1], perml=True)
    elif op.startswith("v_"):
        d.update(cls="valu", w=R[0], r=U(R[1:]))
        if op.startswith(("v_fmac", "v_dot2c", "v_pk_fmac")) or "_dpp" in op or "_sdwa" in op or op.startswith("v_writelane"):
            d["r"] = d["r"] | R[0]
        if "_dpp" in op: d["dpp"] = R[1]
        if op.startswith(TRANS): d["trans"] = True
        if op.startswith(("v_readfirstlane", "v_readlane")): d["rdlane"] = True
        if op.startswith("v_cndmask") and len(R) == 3: d["r"] |= regs("vcc")
        if op.startswith(("v_add_co", "v_sub_co", "v_addc_co")): d["w"] = R[0] | R[1]; d["r"] = U(R[2:])
        if "_sdwa" in op and "dst_sel:DWORD" not in s: d["sdwa_dst"] = True
    elif op.startswith(("buffer_load", "global_load")):
        if " lds" in s: d.update(cls="vmem", r=U(R))
        else: d.update(cls="vmem", w=R[0], r=U(R[1:]))
    elif op.startswith(("buffer_store", "buffer_atomic")):
        d.update(cls="vmem", r=U(R))
        if "x4" in op or "x3" in op: d["data"] = R[0]
    elif op.startswith(("global_store", "global_atomic")):
        d.update(cls="vmem", r=U(R))
        if "x4" in op or "x3" in op: d["data"] = R[1]
    elif op.startswith(("ds_read", "ds_bpermute", "ds_permute", "ds_swizzle")):
        d.update(cls="ds", w=R[0], r=U(R[1:]))
    elif op.startswith("ds_"):
        d.update(cls="ds", r=U(R))
    elif op == "s_nop":
        d.update(cls="nop", n=int(toks[0], 0) + 1)
    elif op.startswith("s_"):
        d.update(cls="salu", w=R[0] if R else set(), r=U(R[1:]))
    return d
def need(p, c):
    n = 0
    vw = {x for x in p["w"] if x[0] in "va"}
    sw = {x for x in p["w"] if x[0] == "s"}
    if p["cls"] == "valu":
        if c["cls"] == "mfma" and vw & c["r"]: n = max(n, 2)
        if c.get("dpp") and vw & c["dpp"]: n = max(n, 2)
        if c.get("perml") and vw & c["r"]: n = max(n, 2)
        if c.get("rdlane") and vw & c["r"]: n = max(n, 1)
        if p.get("trans") and c["cls"] == "valu" and vw & c["r"]: n = max(n, 1)
        if p.get("sdwa_dst") and c["cls"] == "valu" and vw & (c["r"] | c["w"]): n = max(n, 1)
        if sw:
            if c["cls"] == "vmem" and sw & c["r"]: n = max(n, 5)
            if c["cls"] == "valu" and sw & c["r"]: n = max(n, 4 if c.get("rdlane") else 2)
            if c["cls"] == "salu" and sw & c["r"]: n = max(n, 1)
    if p["cls"] == "mfma":
        ps = p["passes"]
        raw = {4: 8, 8: 12}[ps]
        if c["cls"] == "mfma":
            if vw & c["srcAB"]: n = max(n, raw)
            if vw & c["srcC"] and not (vw == c["srcC"] and c["passes"] == ps): n = max(n, {4: 6, 8: 10}[ps])
            if vw & c["w"] and not (vw == c["srcC"]): n = max(n, raw)
        elif c["cls"] in ("valu", "vmem", "ds"):
            if vw & (c["r"] | c["w"]): n = max(n, raw)
        if c["cls"] == "valu" and p["srcC"] & c["w"]: n = max(n, {4: 3, 8: 7}[ps])
    if p["cls"] == "vmem" and p["data"]:
        if p["data"] & c["w"]: n = max(n, 2 if c["cls"] in ("valu", "mfma") else 1)
    if p["cls"] == "salu" and ("s", 124) in p["w"] and c["cls"] in ("vmem", "ds"): n = max(n, 1)
    return n
def pad(lines, report=None):
    out = []; hist = []
    total = 0
    for ln in lines:
        d = parse(ln)
        if d is None:
            out.append(ln); continue
        if d["cls"] != "nop":
            dist = 0; add = 0
            for p in reversed(hist):
                if dist >= 14: break
                if p["cls"] != "nop":
                    k = need(p, d)
                    if k > dist: add = max(add, k - dist)
                dist += p.get("n", 1)
            if add:
                out.append("    s_nop %d" % (add - 1)); hist.append(dict(cls="nop", n=add)); total += add
        out.append(ln); hist.append(d)
        hist = hist[-20:]
    if report is not None: report.append(total)
    return out
```

```python
import sys, struct
from asmlib import *
import hazard

KNAME = "parallel_sum__gqa_block_cached__glu_gated_bilinear__decode_kernel"
HEADER = open("header.txt").read()

def f2u(x): return struct.unpack("<I", struct.pack("<f", x))[0]

WS_EPOCH = 0
WS_QX = 0x10000
WS_GX = 0x90000
WS_ML = 0x100000
WS_OX = 0x110000
WS_FX = 0x210000
WS_STAMP = 0x500000
WS_SIZE = 0x600000
BIG = 0x40000000
L_XN = 0
L_RED1 = 16384
L_RED2 = 24576
L_Q = 32768
L_MX = 34816
L_LS = 34944
L_AH = 35072
L_AO = 36096
L_REDO = 37120
L_FIN = 54016
L_SIZE = 54528
S_W, S_V = 2, 3
R_X, R_WQ, R_GU, R_K, R_V, R_DN, R_WO, R_OUT, R_WS = 4, 8, 12, 16, 20, 24, 28, 32, 36
S_UP = 40
S_T32 = 42; S_TAG = 43
S_SELLO, S_SELHI = 47, 48
S_OFF = 49
S_P, S_S, S_CG4, S_KS, S_CGQ, S_KSQ, S_CGG, S_MID = 50, 51, 52, 53, 54, 55, 56, 57
S_T0, S_T1 = 58, 59
S_RETRY, S_HASDN = 60, 61
S_HI16, S_SCALE, S_LOG2E = 62, 63, 64
S_KVOFF = 65
S_STAMP = 66
S_PC = 98
V_L = 0
U = [32, 64, 96, 128, 160]
ACC = 192
FT = 224
G = 240
V_AX, V_AWQ, V_AGU, V_AK, V_AV, V_ADN, V_AWO = 1, 2, 3, 4, 5, 6, 7
V_T = [8, 9, 10, 11, 12, 13, 14, 15]
ACT0, ACT1, ACT2 = 16, 20, 24
V_W = 28

class Gen:
    def __init__(self, P):
        self.P = P
        self.a = Asm()
        self.seq = 0
        self.known = -1
        self.nst = 0
        self.stamp_names = []
    def e(self, f, *x): self.a.e(f, *x)
    def vm(self, text, W=None):
        if W is not None and self.seq - W > self.known:
            self.e("s_waitcnt vmcnt(%d)", W - 1)
            self.known = self.seq - W
        assert self.seq - self.known <= 63
        self.e(text)
        self.seq += 1
        return self.seq - 1
    def wait(self, op):
        if op > self.known:
            self.e("s_waitcnt vmcnt(%d)", self.seq - 1 - op)
            self.known = op
    def stamp(self, name):
        if self.P.get("stamps"):
            self.e("s_memrealtime s[%d:%d]", S_STAMP + 2 * self.nst, S_STAMP + 2 * self.nst + 1)
            self.nst += 1
            self.stamp_names.append(name)
    def barrier(self):
        self.e("s_waitcnt lgkmcnt(0)")
        self.e("s_barrier")
    def lane_expr(self, dst, terms, tmp, add=None):
        first = True
        for sh, nb, mult in terms:
            t = dst if first else tmp
            if sh == 0: self.e("v_and_b32 v%d, %d, v%d", t, (1 << nb) - 1, V_L)
            elif sh + nb == 6: self.e("v_lshrrev_b32 v%d, %d, v%d", t, sh, V_L)
            else: self.e("v_bfe_u32 v%d, v%d, %d, %d", t, V_L, sh, nb)
            pw = mult & (mult - 1) == 0
            lg = mult.bit_length() - 1
            if first:
                if pw:
                    if lg: self.e("v_lshlrev_b32 v%d, %d, v%d", dst, lg, dst)
                else: self.e("v_mul_u32_u24 v%d, %d, v%d", dst, mult, dst)
            else:
                if pw: self.e("v_lshl_add_u32 v%d, v%d, %d, v%d", dst, tmp, lg, dst)
                else:
                    self.e("v_mul_u32_u24 v%d, %d, v%d", tmp, mult, tmp)
                    self.e("v_add_u32 v%d, v%d, v%d", dst, dst, tmp)
            first = False
        if add is not None: self.e("v_add_u32 v%d, %s, v%d", dst, add, dst)
    def unit_loads(self, dst, kind, va, srd, offs, lo=0, hi=8, W=None, pol="nt"):
        ops = []
        for i in range(lo, hi):
            o = offs[i]
            d = o - self.cur
            if d < 0 or d > 4095:
                self.e("s_add_u32 s%d, s%d, %d", S_OFF, S_OFF, d & 0xffffffff)
                self.cur = o; d = 0
            r = dst + 4 * i
            ops.append(self.vm("buffer_load_dwordx4 %s[%d:%d], v%d, s[%d:%d], s%d offen%s %s" % (
                kind, r, r + 3, va, srd, srd + 3, S_OFF, (" offset:%d" % d) if d else "", pol), W))
        return ops
    def transpose(self, src, j, dst):
        for q in range(4):
            self.e("v_perm_b32 v%d, v%d, v%d, s%d", dst + q, src + (2 * q + 1) * 4 + (j >> 1), src + (2 * q) * 4 + (j >> 1),
                   S_SELHI if j & 1 else S_SELLO)
    def mfma(self, d, a_, b_, c):
        self.e("v_mfma_f32_16x16x32_bf16 v[%d:%d], %s, %s, %s", d, d + 3, a_, b_, c)
    def proc_unit(self, src, act, first, data_is_A):
        def m(j):
            f = "v[%d:%d]" % (FT + 4 * (j % 4), FT + 4 * (j % 4) + 3)
            x = "v[%d:%d]" % (act, act + 3)
            d = ACC + 4 * j
            c = "0" if first else "v[%d:%d]" % (d, d + 3)
            if data_is_A: self.mfma(d, f, x, c)
            else: self.mfma(d, x, f, c)
        for j in range(8):
            self.transpose(src, j, FT + 4 * (j % 4))
            if j: m(j - 1)
        m(7)
    def fold(self, dst, d):
        self.e("v_add_f32_dpp v%d, v%d, v%d row_ror:8 row_mask:0xf bank_mask:0x3", dst, d + 1, d)
        self.e("v_add_f32_dpp v%d, v%d, v%d row_ror:8 row_mask:0xf bank_mask:0xc", dst, d + 2, d + 3)
    def tag(self, r, n):
        for k in range(n):
            self.e("v_and_or_b32 v%d, v%d, -16, s%d", r + k, r + k, S_TAG + (k & 3))
    def gather(self, loads, dst, n, first_ops, skip_flag=None, extra_check=None, sleep=0):
        a = self.a
        lr, lc, lx = a.newlabel("L_retry"), a.newlabel("L_check"), a.newlabel("L_ok")
        self.e("s_mov_b32 s%d, 0", S_RETRY)
        self.wait(first_ops[-1])
        self.e("s_branch %s", lc)
        a.label(lr)
        if sleep: self.e("s_sleep %d", sleep)
        for t in loads: self.e(t)
        self.e("s_add_u32 s%d, s%d, 1", S_RETRY, S_RETRY)
        self.e("s_waitcnt vmcnt(0)")
        a.label(lc)
        for k in range(n):
            self.e("v_xor_b32 v%d, s%d, v%d", dst + k, S_TAG + (k & 3), dst + k)
        t = V_T[0]
        self.e("v_or_b32 v%d, v%d, v%d", t, dst, dst + 1)
        for k in range(2, n, 2):
            self.e("v_or3_b32 v%d, v%d, v%d, v%d", t, t, dst + k, dst + k + 1)
        self.e("v_and_b32 v%d, 15, v%d", t, t)
        if extra_check: extra_check(t)
        self.e("v_cmp_ne_u32 vcc, 0, v%d", t)
        self.e("s_cmp_ge_u32 s%d, %d", S_RETRY, self.P.get("maxretry", 100000))
        self.e("s_cbranch_scc1 %s", lx)
        if skip_flag is not None:
            self.e("s_cmp_eq_u32 s%d, 0", skip_flag)
            self.e("s_cbranch_scc1 %s", lx)
        self.e("s_cbranch_vccnz %s", lr)
        a.label(lx)
    def reduce_publish(self, lred, vaddr):
        T = FT
        for j in range(8): self.fold(T + j, ACC + 4 * j)
        t0, t1 = V_T[0], V_T[1]
        self.e("s_lshl_b32 s%d, s%d, 11", S_T0, S_V)
        self.e("v_lshl_add_u32 v%d, v%d, 5, s%d", t0, V_L, S_T0)
        self.e("ds_write_b128 v%d, v[%d:%d] offset:%d", t0, T, T + 3, lred)
        self.e("ds_write_b128 v%d, v[%d:%d] offset:%d", t0, T + 4, T + 7, lred + 16)
        self.e("s_lshl_b32 s%d, s%d, 9", S_T0, S_V)
        self.e("v_and_b32 v%d, 31, v%d", t1, V_L)
        self.e("v_lshl_add_u32 v%d, v%d, 4, s%d", t1, t1, S_T0)
        self.barrier()
        for k in range(4):
            self.e("ds_read_b128 v[%d:%d], v%d offset:%d", T + 4 * k, T + 4 * k + 3, t1, lred + 2048 * k)
        self.e("s_waitcnt lgkmcnt(2)")
        for k in range(4): self.e("v_add_f32 v%d, v%d, v%d", T + k, T + k, T + 4 + k)
        self.e("s_waitcnt lgkmcnt(0)")
        for k in range(4): self.e("v_add_f32 v%d, v%d, v%d", T + 8 + k, T + 8 + k, T + 12 + k)
        for k in range(4): self.e("v_add_f32 v%d, v%d, v%d", T + k, T + k, T + 8 + k)
        self.tag(T, 4)
        self.e("s_mov_b32 exec_hi, 0")
        self.vm("buffer_store_dwordx4 v[%d:%d], v%d, s[%d:%d], 0 offen sc1" % (T, T + 3, vaddr, R_WS, R_WS + 3))
        self.e("s_mov_b32 exec_hi, -1")

    def build(self):
        P = self.P; a = self.a; e = self.e
        W = P.get("W", 8)
        a(HEADER.rstrip("\n"))
        a("; @launch grid=(256,1,1) block=(256,1,1) lds=%d" % L_SIZE)
        a('.amdgcn_target "amdgcn-amd-amdhsa--gfx950"')
        kernel_header(a, KNAME)
        self.stamp("entry")
        e("s_cmp_ge_u32 s2, 256")
        e("s_cbranch_scc1 L_done")
        for r, off in ((R_X, 0), (R_WQ, 24), (R_GU, 48), (S_UP, 56), (R_WS, 88), (R_K, 8), (R_V, 16), (R_DN, 64), (R_WO, 32), (R_OUT, 72)):
            e("s_load_dwordx2 s[%d:%d], s[0:1], %d", r, r + 1, off)
        e("s_getpc_b64 s[%d:%d]", S_PC, S_PC + 1)
        a.label("L_pc")
        e("v_lshrrev_b32 v1, 6, v0")
        e("v_and_b32 v0, 63, v0")
        e("v_readfirstlane_b32 s%d, v1", S_V)
        if P.get("prefetch", 1):
            e("v_and_b32 v1, 1, v1")
            e("v_lshlrev_b32 v1, 13, v1")
            e("v_lshl_add_u32 v1, v0, 7, v1")
            e("v_min_u32 v1, L_done-L_pc, v1")
            self.vm("global_load_dword v%d, v1, s[%d:%d]" % (V_T[7], S_PC, S_PC + 1))
        for r, n in ((R_X, 16384), (R_WQ, 1024 * 8192), (R_K, 32 << 20), (R_V, 32 << 20), (R_WO, 4096 * 2048), (R_OUT, 16384), (R_WS, WS_SIZE)):
            e("s_mov_b32 s%d, 0x%x", r + 2, n)
            e("s_mov_b32 s%d, 0x20000", r + 3)
        e("s_mov_b32 s%d, 0x20000", R_GU + 3)
        e("s_mov_b32 s%d, 0x20000", R_DN + 3)
        e("s_and_b32 s%d, s2, 7", S_T0)
        e("s_lshr_b32 s%d, s2, 5", S_T1)
        e("s_bfe_u32 s%d, s2, 0x20003", S_MID)
        e("s_lshr_b32 s%d, s2, 6", S_KSQ)
        e("s_bfe_u32 s%d, s2, 0x30003", S_S)
        e("s_lshl3_add_u32 s%d, s%d, s%d", S_P, S_KSQ, S_T0)
        e("s_lshl3_add_u32 s%d, s%d, s%d", S_KS, S_T1, S_T0)
        if P.get("qmap", 1):
            e("s_lshl3_add_u32 s%d, s%d, s%d", S_CGQ, S_T0, S_S)
        else:
            e("s_and_b32 s%d, s2, 63", S_CGQ)
        if P.get("gmap", 1):
            e("s_mul_i32 s%d, s%d, 7", S_CGG, S_T0)
            e("s_add_u32 s%d, s%d, s%d", S_CGG, S_CGG, S_T1)
            e("s_sub_u32 s%d, s%d, 1", S_CGG, S_CGG)
        else:
            e("s_sub_u32 s%d, s%d, 8", S_CGG, S_KS)
        e("s_cmp_ge_u32 s2, 32")
        e("s_cselect_b32 s%d, 0x%x, 0", R_GU + 2, 1024 * 7168)
        e("s_cselect_b32 s%d, s%d, 0", S_CGG, S_CGG)
        e("s_cmp_lt_u32 s2, 224")
        e("s_cselect_b32 s%d, 0x%x, 0", R_DN + 2, 3584 * 2048)
        e("s_cselect_b32 s%d, 1, 0", S_HASDN)
        e("s_mov_b32 s%d, 0x05040100", S_SELLO)
        e("s_mov_b32 s%d, 0x07060302", S_SELHI)
        e("s_mov_b32 s%d, 0xffff0000", S_HI16)
        e("s_lshl_b32 s%d, s%d, 12", S_T0, S_V)
        self.lane_expr(V_AX, [(0, 5, 16), (5, 1, 2048)], V_T[0], "s%d" % S_T0)
        self.lane_expr(V_AWQ, [(0, 3, 16), (3, 3, 8 * 8192)], V_T[0])
        self.lane_expr(V_AGU, [(0, 3, 16), (3, 3, 8 * 7168)], V_T[0])
        e("s_lshl2_add_u32 s%d, s%d, s%d", S_T0, S_KSQ, S_V)
        e("s_lshl_b32 s%d, s%d, 19", S_T0, S_T0)
        e("s_lshl_b32 s%d, s%d, 7", S_T1, S_CGQ)
        e("s_add_u32 s%d, s%d, s%d", S_OFF, S_T0, S_T1)
        e("s_waitcnt lgkmcnt(0)")
        self.stamp("kernarg")
        XR = U[3]; XF = U[4]
        xops = [self.vm("buffer_load_dwordx4 v[%d:%d], v%d, s[%d:%d], 0 offen offset:%d" % (XR + 4 * i, XR + 4 * i + 3, V_AX, R_X, R_X + 3, 512 * i)) for i in range(4)]
        self.cur = 0
        wq_ops = self.unit_loads(U[0], "v", V_AWQ, R_WQ, [8192 * i for i in range(8)])
        e("s_load_dword s%d, s[%d:%d], %d", S_T32, R_WS, R_WS + 1, WS_EPOCH)
        e("s_bitcmp1_b32 s%d, 1", S_MID)
        e("s_cselect_b32 s%d, s%d, s%d", R_GU, S_UP, R_GU)
        e("s_cselect_b32 s%d, s%d, s%d", R_GU + 1, S_UP + 1, R_GU + 1)
        e("s_and_b32 s%d, s%d, 1", S_T0, S_MID)
        e("s_lshl2_add_u32 s%d, s%d, s%d", S_T0, S_T0, S_V)
        e("s_mul_i32 s%d, s%d, %d", S_T0, S_T0, 128 * 7168)
        e("s_lshl_b32 s%d, s%d, 7", S_T1, S_CGG)
        e("s_add_u32 s%d, s%d, s%d", S_OFF, S_T0, S_T1)
        self.cur = 0
        gu_off = lambda u: [(64 * u + i) * 7168 for i in range(8)]
        gu0_ops = self.unit_loads(U[1], "v", V_AGU, R_GU, gu_off(0))
        self.wait(xops[-1])
        for k in range(16):
            e("v_lshlrev_b32 v%d, 16, v%d", XF + 2 * k, XR + k)
            e("v_and_b32 v%d, s%d, v%d", XF + 2 * k + 1, S_HI16, XR + k)
        t0, t1, t2, t3 = V_T[0], V_T[1], V_T[2], V_T[3]
        def red32(t, u):
            for r in (8, 4, 2, 1):
                e("v_add_f32_dpp v%d, v%d, v%d row_ror:%d row_mask:0xf bank_mask:0xf", t, t, t, r)
            e("v_mov_b32 v%d, v%d", u, t)
            e("v_permlane16_swap_b32 v%d, v%d", t, u)
            e("v_add_f32 v%d, v%d, v%d", t, t, u)
        e("v_pk_add_f32 v[%d:%d], v[%d:%d], v[%d:%d]", t0, t1, XF, XF + 1, XF + 2, XF + 3)
        e("v_pk_add_f32 v[%d:%d], v[%d:%d], v[%d:%d]", t2, t3, XF + 4, XF + 5, XF + 6, XF + 7)
        for k in range(8, 32, 4):
            e("v_pk_add_f32 v[%d:%d], v[%d:%d], v[%d:%d]", t0, t1, t0, t1, XF + k, XF + k + 1)
            e("v_pk_add_f32 v[%d:%d], v[%d:%d], v[%d:%d]", t2, t3, t2, t3, XF + k + 2, XF + k + 3)
        e("v_pk_add_f32 v[%d:%d], v[%d:%d], v[%d:%d]", t0, t1, t0, t1, t2, t3)
        e("v_add_f32 v%d, v%d, v%d", t0, t0, t1)
        red32(t0, t1)
        mean, t5 = V_T[4], V_T[5]
        e("v_mul_f32 v%d, 0x%x, v%d", mean, f2u(-1.0 / 1024), t0)
        XD = XR
        for k in range(0, 32, 2):
            e("v_pk_add_f32 v[%d:%d], v[%d:%d], v[%d:%d] op_sel_hi:[1,0]", XD + k, XD + k + 1, XF + k, XF + k + 1, mean, mean + 1)
        e("v_pk_mul_f32 v[%d:%d], v[%d:%d], v[%d:%d]", t0, t1, XD, XD + 1, XD, XD + 1)
        e("v_pk_mul_f32 v[%d:%d], v[%d:%d], v[%d:%d]", t2, t3, XD + 2, XD + 3, XD + 2, XD + 3)
        for k in range(4, 32, 4):
            e("v_pk_fma_f32 v[%d:%d], v[%d:%d], v[%d:%d], v[%d:%d]", t0, t1, XD + k, XD + k + 1, XD + k, XD + k + 1, t0, t1)
            e("v_pk_fma_f32 v[%d:%d], v[%d:%d], v[%d:%d], v[%d:%d]", t2, t3, XD + k + 2, XD + k + 3, XD + k + 2, XD + k + 3, t2, t3)
        e("v_pk_add_f32 v[%d:%d], v[%d:%d], v[%d:%d]", t0, t1, t0, t1, t2, t3)
        e("v_add_f32 v%d, v%d, v%d", t0, t0, t1)
        red32(t0, t1)
        e("v_mul_f32 v%d, 0x%x, v%d", t0, f2u(1.0 / 1024), t0)
        e("v_cvt_pk_bf16_f32 v%d, v%d, v%d", t0, t0, mean)
        e("v_and_b32 v%d, s%d, v%d", mean, S_HI16, t0)
        e("v_lshlrev_b32 v%d, 16, v%d", t0, t0)
        e("v_add_f32 v%d, 0x%x, v%d", t0, f2u(1e-5), t0)
        e("v_cvt_pk_bf16_f32 v%d, v%d, v%d", t0, t0, t0)
        e("v_lshlrev_b32 v%d, 16, v%d", t0, t0)
        e("v_sqrt_f32 v%d, v%d", t0, t0)
        e("v_cvt_pk_bf16_f32 v%d, v%d, v%d", t0, t0, t0)
        e("v_lshlrev_b32 v%d, 16, v%d", t0, t0)
        e("v_rcp_f32 v%d, v%d", t2, t0)
        for k in range(0, 32, 2):
            e("v_pk_add_f32 v[%d:%d], v[%d:%d], v[%d:%d] op_sel_hi:[1,0]", XF + k, XF + k + 1, XF + k, XF + k + 1, mean, mean + 1)
        for k in range(16):
            e("v_cvt_pk_bf16_f32 v%d, v%d, v%d", XR + k, XF + 2 * k, XF + 2 * k + 1)
        for k in range(16):
            e("v_lshlrev_b32 v%d, 16, v%d", XF + 2 * k, XR + k)
            e("v_and_b32 v%d, s%d, v%d", XF + 2 * k + 1, S_HI16, XR + k)
        for k in range(0, 32, 2):
            e("v_pk_mul_f32 v[%d:%d], v[%d:%d], v[%d:%d] op_sel_hi:[1,0]", XF + k, XF + k + 1, XF + k, XF + k + 1, t2, t3)
        for k in range(16):
            e("v_cvt_pk_bf16_f32 v%d, v%d, v%d", XR + k, XF + 2 * k, XF + 2 * k + 1)
        for i in range(4):
            e("ds_write_b128 v%d, v[%d:%d] offset:%d", V_AX, XR + 4 * i, XR + 4 * i + 3, L_XN + 512 * i)
        fa, fb = V_T[0], V_T[1]
        self.lane_expr(fa, [(0, 1, 16), (1, 3, 2048), (4, 2, 32)], V_T[2])
        e("s_lshl2_add_u32 s%d, s%d, s%d", S_T0, S_KSQ, S_V)
        e("s_lshl_b32 s%d, s%d, 7", S_T0, S_T0)
        e("s_and_b32 s%d, s%d, 1", S_T1, S_MID)
        e("s_lshl2_add_u32 s%d, s%d, s%d", S_T1, S_T1, S_V)
        e("s_lshl_b32 s%d, s%d, 8", S_T1, S_T1)
        e("v_add_u32 v%d, s%d, v%d", fb, S_T1, fa)
        e("v_add_u32 v%d, s%d, v%d", fa, S_T0, fa)
        self.barrier()
        e("ds_read_b128 v[%d:%d], v%d offset:%d", ACT0, ACT0 + 3, fa, L_XN)
        e("ds_read_b128 v[%d:%d], v%d offset:%d", ACT1, ACT1 + 3, fb, L_XN)
        e("ds_read_b128 v[%d:%d], v%d offset:%d", ACT2, ACT2 + 3, fb, L_XN + 128)
        e("s_add_u32 s%d, s%d, 0x11111111", S_T32, S_T32)
        for k in range(4):
            e("s_bfe_u32 s%d, s%d, 0x%x", S_TAG + k, S_T32, 0x40000 + 4 * k)
        self.stamp("ln")
        vq = V_T[6]
        e("s_lshr_b32 s%d, s%d, 4", S_T0, S_CGQ)
        e("s_lshl3_add_u32 s%d, s%d, s%d", S_T0, S_V, S_T0)
        e("s_lshl2_add_u32 s%d, s%d, s%d", S_T0, S_T0, S_KSQ)
        e("s_and_b32 s%d, s%d, 15", S_T1, S_CGQ)
        e("s_lshl4_add_u32 s%d, s%d, s%d", S_T0, S_T0, S_T1)
        e("s_lshl_b32 s%d, s%d, 8", S_T0, S_T0)
        e("s_add_u32 s%d, s%d, 0x%x", S_T0, S_T0, WS_QX)
        self.lane_expr(vq, [(0, 4, 16), (4, 1, 65536)], V_T[2], "s%d" % S_T0)
        self.wait(wq_ops[-1])
        pre = P.get("pre1", 2)
        gu1_ops = self.unit_loads(U[2], "v", V_AGU, R_GU, gu_off(1), 0, pre)
        e("s_waitcnt lgkmcnt(0)")
        self.proc_unit(U[0], ACT0, True, False)
        self.reduce_publish(L_RED1, vq)
        self.stamp("qpub")
        gu1_ops += self.unit_loads(U[2], "v", V_AGU, R_GU, gu_off(1), pre, 8, W)
        self.lane_expr(V_AK, [(0, 1, 16), (1, 3, 256), (4, 2, 32)], V_T[0])
        self.lane_expr(V_AV, [(0, 4, 16), (4, 2, 512)], V_T[0])
        e("s_lshl2_add_u32 s%d, s%d, s%d", S_T0, S_S, S_V)
        e("s_lshl_b32 s%d, s%d, 13", S_T0, S_T0)
        e("s_lshl_b32 s%d, s%d, 20", S_T1, S_P)
        e("s_add_u32 s%d, s%d, s%d", S_KVOFF, S_T0, S_T1)
        e("s_mov_b32 s%d, s%d", S_OFF, S_KVOFF)
        self.cur = 0
        k_off = lambda u: [u * 32 * 8192 + (i >> 1) * 2048 + (i & 1) * 128 for i in range(8)]
        v_off = lambda u: [u * 32 * 8192 + (i >> 1) * 2048 + (i & 1) * 256 for i in range(8)]
        self.wait(gu0_ops[-1])
        k_ops = self.unit_loads(0, "a", V_AK, R_K, k_off(0), 0, 1)
        self.proc_unit(U[1], ACT1, True, False)
        k_ops += self.unit_loads(0, "a", V_AK, R_K, k_off(0), 1, 8, W)
        e("s_lshl2_add_u32 s%d, s%d, s%d", S_T0, S_CGG, S_MID)
        e("s_lshl2_add_u32 s%d, s%d, s%d", S_T0, S_T0, S_V)
        e("s_lshl_b32 s%d, s%d, 9", S_T0, S_T0)
        e("s_add_u32 s%d, s%d, 0x%x", S_T0, S_T0, WS_GX)
        e("s_cmp_ge_u32 s2, 32")
        e("s_cselect_b32 s%d, s%d, 0x%x", S_T0, S_T0, BIG)
        self.lane_expr(vq, [(0, 5, 16)], V_T[2], "s%d" % S_T0)
        self.wait(gu1_ops[-1])
        k_ops += self.unit_loads(32, "a", V_AK, R_K, k_off(1), 0, pre)
        self.proc_unit(U[2], ACT2, False, False)
        self.reduce_publish(L_RED2, vq)
        self.stamp("gupub")
        k_ops += self.unit_loads(32, "a", V_AK, R_K, k_off(1), pre, 8, W)
        k_ops += self.unit_loads(64, "a", V_AK, R_K, k_off(2), 0, 8, W)
        vg = V_T[6]
        e("s_lshl_b32 s%d, s%d, 14", S_T0, S_P)
        e("s_lshl_b32 s%d, s%d, 10", S_T1, S_V)
        e("s_add_u32 s%d, s%d, s%d", S_T0, S_T0, S_T1)
        e("s_add_u32 s%d, s%d, 0x%x", S_T0, S_T0, WS_QX)
        e("v_lshl_add_u32 v%d, v%d, 4, s%d", vg, V_L, S_T0)
        e("v_add_u32 v%d, 8192, v%d", V_T[7], vg)
        e("s_movk_i32 s%d, 4096", S_T1)
        qld = ["buffer_load_dwordx4 v[%d:%d], v%d, s[%d:%d], %s offen sc1" % (G + 4 * i, G + 4 * i + 3, vg if i < 2 else V_T[7], R_WS, R_WS + 3, ("s%d" % S_T1) if i & 1 else "0") for i in range(4)]
        k_ops += self.unit_loads(96, "a", V_AK, R_K, k_off(3), 0, 8, W)
        q_ops = [self.vm(t, W) for t in qld]
        e("s_mov_b32 s%d, s%d", S_OFF, S_KVOFF)
        self.cur = 0
        v0_ops = self.unit_loads(U[0], "v", V_AV, R_V, v_off(0), 0, 8, W)
        pre2 = P.get("pre2", 6)
        self.wait(q_ops[-1])
        v1_ops = self.unit_loads(U[1], "v", V_AV, R_V, v_off(1), 0, pre2)
        self.gather(qld, G, 16, q_ops)
        self.stamp("qgot")
        for k in range(4):
            e("v_add_f32 v%d, v%d, v%d", G + k, G + k, G + 4 + k)
            e("v_add_f32 v%d, v%d, v%d", G + 8 + k, G + 8 + k, G + 12 + k)
        for k in range(4): e("v_add_f32 v%d, v%d, v%d", G + k, G + k, G + 8 + k)
        e("v_cvt_pk_bf16_f32 v%d, v%d, v%d", G, G, G + 1)
        e("v_cvt_pk_bf16_f32 v%d, v%d, v%d", G + 1, G + 2, G + 3)
        e("s_lshl_b32 s%d, s%d, 9", S_T0, S_V)
        e("v_lshl_add_u32 v%d, v%d, 3, s%d", V_T[0], V_L, S_T0)
        e("ds_write_b64 v%d, v[%d:%d] offset:%d", V_T[0], G, G + 1, L_Q)
        self.lane_expr(V_T[1], [(0, 3, 256), (3, 1, 16), (4, 2, 32)], V_T[2])
        self.barrier()
        e("ds_read_b128 v[%d:%d], v%d offset:%d", ACT0, ACT0 + 3, V_T[1], L_Q)
        e("ds_read_b128 v[%d:%d], v%d offset:%d", ACT1, ACT1 + 3, V_T[1], L_Q + 128)
        e("s_mov_b32 s%d, 0x%x", S_SCALE, f2u(128 ** -0.5))
        e("s_mov_b32 s%d, 0x%x", S_LOG2E, f2u(1.4426950408889634))
        e("s_waitcnt lgkmcnt(0)")
        S = U[4]; PB = U[4] + 16
        D = lambda t: (U[3] + 4 * t) if t < 8 else (ACC + 4 * (t - 8))
        def rnd(t):
            x = V_T[0]
            e("v_cvt_pk_bf16_f32 v%d, v%d, v%d", x, S + t, S + t + 1)
            e("v_lshlrev_b32 v%d, 16, v%d", S + t, x)
            e("v_and_b32 v%d, s%d, v%d", S + t + 1, S_HI16, x)
            e("v_mul_f32 v%d, s%d, v%d", S + t, S_SCALE, S + t)
            e("v_mul_f32 v%d, s%d, v%d", S + t + 1, S_SCALE, S + t + 1)
            e("v_cvt_pk_bf16_f32 v%d, v%d, v%d", x, S + t, S + t + 1)
            e("v_lshlrev_b32 v%d, 16, v%d", S + t, x)
            e("v_and_b32 v%d, s%d, v%d", S + t + 1, S_HI16, x)
        LAG = 4
        for t in range(16 + LAG):
            if t < 16:
                self.mfma(D(t), "a[%d:%d]" % (8 * t, 8 * t + 3), "v[%d:%d]" % (ACT0, ACT0 + 3), "0")
                self.mfma(D(t), "a[%d:%d]" % (8 * t + 4, 8 * t + 7), "v[%d:%d]" % (ACT1, ACT1 + 3), "v[%d:%d]" % (D(t), D(t) + 3))
            if t >= LAG:
                tt = t - LAG
                self.fold(S + tt, D(tt))
                if tt & 1: rnd(tt - 1)
        mx, u_ = V_T[2], V_T[3]
        e("v_max3_f32 v%d, v%d, v%d, v%d", mx, S, S + 1, S + 2)
        for k in range(3, 15, 2):
            e("v_max3_f32 v%d, v%d, v%d, v%d", mx, mx, S + k, S + k + 1)
        e("v_max_f32 v%d, v%d, v%d", mx, mx, S + 15)
        def xlane(op, r, u):
            e("%s_dpp v%d, v%d, v%d row_ror:8 row_mask:0xf bank_mask:0xf", op, r, r, r)
            e("v_mov_b32 v%d, v%d", u, r)
            e("v_permlane16_swap_b32 v%d, v%d", r, u)
            e("%s v%d, v%d, v%d", op, r, r, u)
            e("v_mov_b32 v%d, v%d", u, r)
            e("v_permlane32_swap_b32 v%d, v%d", r, u)
            e("%s v%d, v%d, v%d", op, r, r, u)
        xlane("v_max_f32", mx, u_)
        ha, hw = V_T[4], V_T[5]
        self.lane_expr(ha, [(0, 3, 16)], V_T[0])
        e("s_lshl_b32 s%d, s%d, 2", S_T0, S_V)
        e("v_add_u32 v%d, s%d, v%d", hw, S_T0, ha)
        e("ds_write_b32 v%d, v%d offset:%d", hw, mx, L_MX)
        self.barrier()
        e("ds_read_b128 v[%d:%d], v%d offset:%d", FT, FT + 3, ha, L_MX)
        e("s_waitcnt lgkmcnt(0)")
        e("v_max3_f32 v%d, v%d, v%d, v%d", mx, FT, FT + 1, FT + 2)
        e("v_max_f32 v%d, v%d, v%d", mx, mx, FT + 3)
        e("v_mul_f32 v%d, s%d, v%d", u_, S_LOG2E, mx)
        for t in range(16):
            e("v_fma_f32 v%d, v%d, s%d, -v%d", S + t, S + t, S_LOG2E, u_)
        for t in range(16):
            e("v_exp_f32 v%d, v%d", S + t, S + t)
        ls = V_T[0]
        e("v_add_f32 v%d, v%d, v%d", ls, S, S + 1)
        e("v_add_f32 v%d, v%d, v%d", V_T[1], S + 2, S + 3)
        for t in range(4, 16, 2):
            e("v_add_f32 v%d, v%d, v%d", ls, ls, S + t)
            e("v_add_f32 v%d, v%d, v%d", V_T[1], V_T[1], S + t + 1)
        e("v_add_f32 v%d, v%d, v%d", ls, ls, V_T[1])
        xlane("v_add_f32", ls, u_)
        e("ds_write_b32 v%d, v%d offset:%d", hw, ls, L_LS)
        for t in range(16):
            e("v_mov_b32_dpp v%d, v%d row_ror:8 row_mask:0xf bank_mask:0xf", PB + t, S + t)
        for t in range(16):
            e("v_cvt_pk_bf16_f32 v%d, v%d, v%d", PB + t, S + t, PB + t)
        e("s_and_b32 s%d, s%d, 3", S_T0, S_P)
        e("s_lshl_b32 s%d, s%d, 13", S_T0, S_T0)
        e("s_lshr_b32 s%d, s%d, 2", S_T1, S_P)
        e("s_lshl3_add_u32 s%d, s%d, s%d", S_T1, S_T1, S_S)
        e("s_lshl4_add_u32 s%d, s%d, s%d", S_T0, S_T1, S_T0)
        e("s_add_u32 s%d, s%d, 0x%x", S_T0, S_T0, WS_ML)
        e("v_lshl_add_u32 v%d, v%d, 6, s%d", V_T[6], ha, S_T0)
        self.barrier()
        e("ds_read_b128 v[%d:%d], v%d offset:%d", FT, FT + 3, ha, L_LS)
        e("s_lshl_b32 s%d, s%d, 1", S_T0, S_V)
        e("s_lshl_b64 exec, 3, s%d", S_T0)
        e("s_waitcnt lgkmcnt(0)")
        e("v_add_f32 v%d, v%d, v%d", FT, FT, FT + 1)
        e("v_add_f32 v%d, v%d, v%d", FT + 2, FT + 2, FT + 3)
        e("v_add_f32 v%d, v%d, v%d", FT + 1, FT, FT + 2)
        e("v_mov_b32 v%d, v%d", FT, mx)
        e("v_mov_b32 v%d, s%d", FT + 2, S_T32)
        e("v_mov_b32 v%d, s%d", FT + 3, S_T32)
        self.tag(FT, 4)
        self.vm("buffer_store_dwordx4 v[%d:%d], v%d, s[%d:%d], 0 offen sc1" % (FT, FT + 3, V_T[6], R_WS, R_WS + 3))
        e("s_mov_b64 exec, -1")
        self.stamp("qk")
        v1_ops += self.unit_loads(U[1], "v", V_AV, R_V, v_off(1), pre2, 8, W)
        self.wait(v0_ops[-1])
        v2_ops = self.unit_loads(U[2], "v", V_AV, R_V, v_off(2), 0, 1)
        self.proc_unit(U[0], PB, True, True)
        v2_ops += self.unit_loads(U[2], "v", V_AV, R_V, v_off(2), 1, 8, W)
        vh = V_T[6]; vx = V_T[7]
        e("s_lshl_b32 s%d, s%d, 13", S_T0, S_KS)
        e("s_lshl_b32 s%d, s%d, 9", S_T1, S_V)
        e("s_add_u32 s%d, s%d, s%d", S_T0, S_T0, S_T1)
        e("s_add_u32 s%d, s%d, 0x%x", S_T0, S_T0, WS_GX)
        e("s_cmp_lg_u32 s%d, 0", S_HASDN)
        e("s_cselect_b32 s%d, s%d, 0x%x", S_T0, S_T0, BIG)
        self.lane_expr(vh, [(0, 3, 16), (3, 1, 2048), (4, 1, 128), (5, 1, 256)], V_T[0], "s%d" % S_T0)
        e("s_movk_i32 s%d, 4096", S_T1)
        HG = ACT0
        hld = ["buffer_load_dwordx4 v[%d:%d], v%d, s[%d:%d], %s offen sc1" % (HG + 4 * i, HG + 4 * i + 3, vh, R_WS, R_WS + 3, ("s%d" % S_T1) if i else "0") for i in range(2)]
        h_ops = [self.vm(t, W) for t in hld]
        self.wait(v1_ops[-1])
        v3_ops = self.unit_loads(U[3], "v", V_AV, R_V, v_off(3), 0, 1)
        self.proc_unit(U[1], PB + 4, False, True)
        v3_ops += self.unit_loads(U[3], "v", V_AV, R_V, v_off(3), 1, 8, W)
        self.wait(v2_ops[-1])
        self.proc_unit(U[2], PB + 8, False, True)
        self.gather(hld, HG, 8, h_ops, skip_flag=S_HASDN)
        for k in range(8):
            e("v_add_f32_dpp v%d, v%d, v%d row_ror:8 row_mask:0xf bank_mask:0xf", HG + k, HG + k, HG + k)
        for k in range(4):
            e("v_cvt_pk_bf16_f32 v%d, v%d, v%d", HG + k, HG + k, HG + 4 + k)
        for k in range(4):
            e("v_and_b32 v%d, s%d, v%d", HG + 4 + k, S_HI16, HG + k)
            e("v_lshlrev_b32 v%d, 16, v%d", HG + k, HG + k)
        for k in range(4):
            e("v_mul_f32 v%d, v%d, v%d", HG + k, HG + k, HG + 4 + k)
        e("v_cvt_pk_bf16_f32 v%d, v%d, v%d", HG, HG, HG + 1)
        e("v_cvt_pk_bf16_f32 v%d, v%d, v%d", HG + 1, HG + 2, HG + 3)
        vaw = V_AX
        e("s_lshl_b32 s%d, s%d, 8", S_T0, S_V)
        self.lane_expr(vaw, [(0, 3, 8), (4, 1, 64), (5, 1, 128)], V_T[0], "s%d" % S_T0)
        e("ds_write_b64 v%d, v[%d:%d] offset:%d", vaw, HG, HG + 1, L_AH)
        vml = V_T[6]
        e("s_lshr_b32 s%d, s%d, 1", S_T0, S_KS)
        e("s_lshl2_add_u32 s%d, s%d, s%d", S_T0, S_T0, S_V)
        e("s_lshl_b32 s%d, s%d, 8", S_T0, S_T0)
        e("s_add_u32 s%d, s%d, 0x%x", S_T0, S_T0, WS_ML)
        self.lane_expr(vml, [(3, 1, 16), (5, 1, 128)], V_T[0], "s%d" % S_T0)
        mld = ["buffer_load_dwordx4 v[%d:%d], v%d, s[%d:%d], 0 offen offset:%d sc1" % (G + 4 * i, G + 4 * i + 3, vml, R_WS, R_WS + 3, 32 * i) for i in range(4)]
        ml_ops = [self.vm(t) for t in mld]
        e("s_lshr_b32 s%d, s%d, 3", S_T0, S_KS)
        e("s_lshl2_add_u32 s%d, s%d, s%d", S_T0, S_T0, S_MID)
        e("s_and_b32 s%d, s%d, 7", S_T1, S_KS)
        e("s_lshl3_add_u32 s%d, s%d, s%d", S_T0, S_T0, S_T1)
        e("s_lshl_b32 s%d, s%d, 6", S_T0, S_T0)
        self.lane_expr(vx, [(0, 4, 4)], V_T[0], "s%d" % S_T0)
        XRES = ACT2
        self.vm("buffer_load_dword v%d, v%d, s[%d:%d], 0 offen" % (XRES, vx, R_X, R_X + 3))
        W2 = P.get("W2", W)
        self.lane_expr(V_ADN, [(0, 3, 16), (3, 3, 8 * 2048)], V_T[0])
        self.lane_expr(V_AWO, [(0, 3, 16), (3, 2, 2 * 2048), (5, 1, 32 * 2048)], V_T[0])
        e("s_lshl_b32 s%d, s%d, 17", S_T0, S_KS)
        e("s_lshl2_add_u32 s%d, s%d, s%d", S_T1, S_MID, S_V)
        e("s_lshl_b32 s%d, s%d, 7", S_T1, S_T1)
        e("s_add_u32 s%d, s%d, s%d", S_KVOFF, S_T0, S_T1)
        e("s_mov_b32 s%d, s%d", S_OFF, S_KVOFF)
        self.cur = 0
        dn_ops = self.unit_loads(U[0], "v", V_ADN, R_DN, [2048 * i for i in range(8)], 0, 8, W2 + 5)
        vo = V_AWQ; vr = V_AGU; vw = V_AK
        e("s_and_b32 s%d, s%d, 3", S_T0, S_P)
        e("s_lshl2_add_u32 s%d, s%d, s%d", S_T0, S_T0, S_V)
        e("s_lshl_b32 s%d, s%d, 16", S_T0, S_T0)
        e("s_lshr_b32 s%d, s%d, 2", S_T1, S_P)
        e("s_lshl3_add_u32 s%d, s%d, s%d", S_T1, S_T1, S_S)
        e("s_lshl_b32 s%d, s%d, 8", S_T1, S_T1)
        e("s_add_u32 s%d, s%d, s%d", S_T0, S_T0, S_T1)
        e("s_add_u32 s%d, s%d, 0x%x", S_T0, S_T0, WS_OX)
        self.lane_expr(vo, [(0, 4, 16), (4, 2, 16384)], V_T[0], "s%d" % S_T0)
        e("s_mul_i32 s%d, s%d, 4224", S_T0, S_V)
        self.lane_expr(vw, [(0, 3, 16), (4, 2, 128)], V_T[0], "s%d" % S_T0)
        e("s_lshl_b32 s%d, s%d, 5", S_T0, S_V)
        self.lane_expr(vr, [(0, 3, 528), (3, 2, 128), (5, 1, 16)], V_T[0], "s%d" % S_T0)
        self.wait(v3_ops[-1])
        self.stamp("vgot")
        self.proc_unit(U[3], PB + 12, False, True)
        e("s_mov_b32 exec_lo, 0x00ff00ff")
        e("s_mov_b32 exec_hi, 0x00ff00ff")
        for j in range(8):
            e("ds_write_b128 v%d, v[%d:%d] offset:%d", vw, ACC + 4 * j, ACC + 4 * j + 3, L_REDO + 528 * j)
        e("s_mov_b64 exec, -1")
        self.barrier()
        T = FT
        for k in range(4):
            e("ds_read_b128 v[%d:%d], v%d offset:%d", T + 4 * k, T + 4 * k + 3, vr, L_REDO + 4224 * k)
        vfr = V_AV
        self.lane_expr(vfr, [(0, 1, 16), (1, 3, 128), (4, 2, 32)], V_T[0])
        e("s_waitcnt lgkmcnt(2)")
        for k in range(4): e("v_add_f32 v%d, v%d, v%d", T + k, T + k, T + 4 + k)
        e("s_waitcnt lgkmcnt(0)")
        for k in range(4): e("v_add_f32 v%d, v%d, v%d", T + 8 + k, T + 8 + k, T + 12 + k)
        for k in range(4): e("v_add_f32 v%d, v%d, v%d", T + k, T + k, T + 8 + k)
        self.tag(T, 4)
        self.vm("buffer_store_dwordx4 v[%d:%d], v%d, s[%d:%d], 0 offen sc1" % (T, T + 3, vo, R_WS, R_WS + 3))
        self.stamp("opub")
        e("ds_read_b128 v[%d:%d], v%d offset:%d", ACT0, ACT0 + 3, vfr, L_AH)
        e("s_mov_b32 s%d, s%d", S_OFF, S_KVOFF)
        self.cur = 0
        wo_off = [(8 * (i & 3) + (i >> 2)) * 2048 for i in range(8)]
        order = [0, 4, 1, 5, 2, 6, 3, 7]
        wo_ops = []
        pre3 = P.get("pre3", 3)
        for n_, i in enumerate(order[:pre3]):
            wo_ops += self.unit_loads(U[1], "v", V_AWO, R_WO, wo_off, i, i + 1, None)
        def ml_extra(t):
            e("s_and_b32 s%d, s%d, -16", S_T0, S_T32)
            for i in range(4):
                e("v_xor_b32 v%d, s%d, v%d", G + 4 * i + 2, S_T0, G + 4 * i + 2)
                e("v_xor_b32 v%d, s%d, v%d", G + 4 * i + 3, S_T0, G + 4 * i + 3)
                e("v_or3_b32 v%d, v%d, v%d, v%d", t, t, G + 4 * i + 2, G + 4 * i + 3)
        self.gather(mld, G, 16, ml_ops, extra_check=ml_extra)
        M = V_T[0]; Ls = V_T[1]
        e("v_max3_f32 v%d, v%d, v%d, v%d", M, G, G + 4, G + 8)
        e("v_max_f32 v%d, v%d, v%d", M, M, G + 12)
        e("v_max_f32_dpp v%d, v%d, v%d row_ror:8 row_mask:0xf bank_mask:0xf", M, M, M)
        for i in range(4): e("v_sub_f32 v%d, v%d, v%d", V_W + i, G + 4 * i, M)
        for i in range(4): e("v_mul_f32 v%d, s%d, v%d", V_W + i, S_LOG2E, V_W + i)
        for i in range(4): e("v_exp_f32 v%d, v%d", V_W + i, V_W + i)
        e("v_mul_f32 v%d, v%d, v%d", Ls, V_W, G + 1)
        for i in range(1, 4): e("v_fmac_f32 v%d, v%d, v%d", Ls, V_W + i, G + 4 * i + 1)
        e("v_add_f32_dpp v%d, v%d, v%d row_ror:8 row_mask:0xf bank_mask:0xf", Ls, Ls, Ls)
        e("v_rcp_f32 v%d, v%d", Ls, Ls)
        for i in range(4): e("v_mul_f32 v%d, v%d, v%d", V_W + i, V_W + i, Ls)
        for n_, i in enumerate(order[pre3:]):
            wo_ops += self.unit_loads(U[1], "v", V_AWO, R_WO, wo_off, i, i + 1, W2)
        vog = V_T[6]
        e("s_lshl2_add_u32 s%d, s%d, s%d", S_T0, S_KS, S_V)
        e("s_lshl_b32 s%d, s%d, 12", S_T0, S_T0)
        e("s_add_u32 s%d, s%d, 0x%x", S_T0, S_T0, WS_OX)
        self.lane_expr(vog, [(0, 3, 16), (3, 1, 256), (4, 1, 128), (5, 1, 2048)], V_T[0], "s%d" % S_T0)
        old = ["buffer_load_dwordx4 v[%d:%d], v%d, s[%d:%d], 0 offen offset:%d sc1" % (G + 4 * i, G + 4 * i + 3, vog, R_WS, R_WS + 3, 512 * i) for i in range(4)]
        vf = V_AWQ; vfg = V_AGU
        e("s_lshl_b32 s%d, s%d, 19", S_T0, S_MID)
        e("s_lshl_b32 s%d, s%d, 14", S_T1, S_V)
        e("s_add_u32 s%d, s%d, s%d", S_T0, S_T0, S_T1)
        e("s_lshl_b32 s%d, s%d, 7", S_T1, S_KS)
        e("s_add_u32 s%d, s%d, s%d", S_T0, S_T0, S_T1)
        e("s_add_u32 s%d, s%d, 0x%x", S_T0, S_T0, WS_FX)
        self.lane_expr(vf, [(0, 2, 16), (2, 1, 8192), (3, 3, 65536)], V_T[0], "s%d" % S_T0)
        e("s_lshl_b32 s%d, s%d, 19", S_T0, S_MID)
        e("s_lshl2_add_u32 s%d, s%d, s%d", S_T1, S_KS, S_V)
        e("s_lshl_b32 s%d, s%d, 11", S_T1, S_T1)
        e("s_add_u32 s%d, s%d, s%d", S_T0, S_T0, S_T1)
        e("s_add_u32 s%d, s%d, 0x%x", S_T0, S_T0, WS_FX)
        e("v_lshl_add_u32 v%d, v%d, 4, s%d", vfg, V_L, S_T0)
        self.wait(dn_ops[-1])
        e("s_waitcnt lgkmcnt(0)")
        self.proc_unit(U[0], ACT0, True, False)
        og = P.get("ogpos", 4)
        self.wait(wo_ops[8 - og - 1]) if og < 8 else None
        o_ops = [self.vm(t) for t in old]
        self.wait(wo_ops[-1])
        self.stamp("wogot")
        WT = U[2]
        for j in range(8): self.transpose(U[1], j, WT + 4 * j)
        self.gather(old, G, 16, o_ops, sleep=P.get("osleep", 0))
        self.stamp("ogot")
        for k in range(4): e("v_mul_f32 v%d, v%d, v%d", G + k, V_W, G + k)
        for i in range(1, 4):
            for k in range(4): e("v_fmac_f32 v%d, v%d, v%d", G + k, V_W + i, G + 4 * i + k)
        for k in range(4):
            e("v_add_f32_dpp v%d, v%d, v%d row_ror:8 row_mask:0xf bank_mask:0xf", G + k, G + k, G + k)
        e("v_cvt_pk_bf16_f32 v%d, v%d, v%d", G, G, G + 1)
        e("v_cvt_pk_bf16_f32 v%d, v%d, v%d", G + 1, G + 2, G + 3)
        e("ds_write_b64 v%d, v[%d:%d] offset:%d", vaw, G, G + 1, L_AO)
        self.barrier()
        e("ds_read_b128 v[%d:%d], v%d offset:%d", ACT1, ACT1 + 3, vfr, L_AO)
        e("s_waitcnt lgkmcnt(0)")
        for j in range(8):
            d = ACC + 4 * j
            self.mfma(d, "v[%d:%d]" % (ACT1, ACT1 + 3), "v[%d:%d]" % (WT + 4 * j, WT + 4 * j + 3), "v[%d:%d]" % (d, d + 3))
        for jh in range(2):
            for j in range(4 * jh, 4 * jh + 4): self.fold(T + j, ACC + 4 * j)
            self.tag(T + 4 * jh, 4)
            self.vm("buffer_store_dwordx4 v[%d:%d], v%d, s[%d:%d], 0 offen offset:%d sc1" % (T + 4 * jh, T + 4 * jh + 3, vf, R_WS, R_WS + 3, 64 * jh))
        self.stamp("fpub")
        vfin = V_AK
        e("s_lshl_b32 s%d, s%d, 7", S_T0, S_V)
        self.lane_expr(vfin, [(0, 2, 32), (2, 1, 16), (4, 1, 8), (5, 1, 4)], V_T[0], "s%d" % S_T0)
        fld = ["buffer_load_dwordx4 v[%d:%d], v%d, s[%d:%d], 0 offen offset:%d sc1" % (G + 4 * i, G + 4 * i + 3, vfg, R_WS, R_WS + 3, 1024 * i) for i in range(2)]
        if P.get("fwait", 1):
            e("s_waitcnt vmcnt(0)"); self.known = self.seq - 1
        f_ops = [self.vm(t) for t in fld]
        self.gather(fld, G, 8, f_ops, sleep=P.get("fsleep", 0))
        self.stamp("fgot")
        for k in range(4): e("v_add_f32 v%d, v%d, v%d", G + k, G + k, G + 4 + k)
        e("v_permlane32_swap_b32 v%d, v%d", G, G + 1)
        e("v_permlane32_swap_b32 v%d, v%d", G + 2, G + 3)
        e("v_add_f32 v%d, v%d, v%d", G, G, G + 1)
        e("v_add_f32 v%d, v%d, v%d", G + 2, G + 2, G + 3)
        e("v_permlane16_swap_b32 v%d, v%d", G, G + 2)
        e("v_add_f32 v%d, v%d, v%d", G, G, G + 2)
        e("v_add_f32_dpp v%d, v%d, v%d row_ror:8 row_mask:0xf bank_mask:0xf", G, G, G)
        e("ds_write_b32 v%d, v%d offset:%d", vfin, G, L_FIN)
        e("v_and_b32 v%d, 15, v%d", V_T[0], V_L)
        e("v_lshlrev_b32 v%d, 3, v%d", V_T[0], V_T[0])
        self.barrier()
        e("s_cmp_lg_u32 s%d, 0", S_V)
        e("s_cbranch_scc1 L_tail")
        for k in range(4):
            e("ds_read_b64 v[%d:%d], v%d offset:%d", G + 2 * k, G + 2 * k + 1, V_T[0], L_FIN + 128 * k)
        e("v_lshlrev_b32 v%d, 16, v%d", G + 8, XRES)
        e("v_and_b32 v%d, s%d, v%d", G + 9, S_HI16, XRES)
        e("v_mov_b32 v%d, s%d", G + 10, S_T32)
        e("v_mov_b32 v%d, 0", G + 11)
        e("s_waitcnt lgkmcnt(0)")
        e("v_pk_add_f32 v[%d:%d], v[%d:%d], v[%d:%d]", G, G + 1, G, G + 1, G + 2, G + 3)
        e("v_pk_add_f32 v[%d:%d], v[%d:%d], v[%d:%d]", G + 4, G + 5, G + 4, G + 5, G + 6, G + 7)
        e("v_pk_add_f32 v[%d:%d], v[%d:%d], v[%d:%d]", G, G + 1, G, G + 1, G + 4, G + 5)
        e("v_pk_add_f32 v[%d:%d], v[%d:%d], v[%d:%d]", G, G + 1, G, G + 1, G + 8, G + 9)
        e("v_cvt_pk_bf16_f32 v%d, v%d, v%d", G, G, G + 1)
        e("s_mov_b64 exec, 0xffff")
        e("buffer_store_dword v%d, v%d, s[%d:%d], 0 offen", G, vx, R_OUT, R_OUT + 3)
        e("s_cmp_lg_u32 s2, 0")
        e("s_cbranch_scc1 L_tail")
        e("s_mov_b64 exec, 1")
        e("buffer_store_dword v%d, v%d, s[%d:%d], 0 offen offset:%d", G + 10, G + 11, R_WS, R_WS + 3, WS_EPOCH)
        a.label("L_tail")
        if P.get("stamps"):
            e("s_mov_b64 exec, 1")
            e("s_waitcnt vmcnt(0)")
            self.stamp("end")
            e("s_getreg_b32 s%d, hwreg(HW_REG_XCC_ID)", S_STAMP + 30)
            e("s_mov_b32 s%d, s%d", S_STAMP + 31, S_RETRY)
            e("s_lshl2_add_u32 s%d, s2, s%d", S_T0, S_V)
            e("s_lshl_b32 s%d, s%d, 7", S_T0, S_T0)
            e("s_add_u32 s%d, s%d, 0x%x", S_T0, S_T0, WS_STAMP)
            e("v_mov_b32 v1, s%d", S_T0)
            e("s_waitcnt lgkmcnt(0)")
            for k in range(8):
                for j in range(4): e("v_mov_b32 v%d, s%d", 4 + j, S_STAMP + 4 * k + j)
                e("buffer_store_dwordx4 v[4:7], v1, s[%d:%d], 0 offen offset:%d", R_WS, R_WS + 3, 16 * k)
        a.label("L_done")
        e("s_endpgm")
        rep = []
        a.lines = hazard.pad(a.lines, rep)
        kernel_desc(a, KNAME, 384, sgpr=102, accum=256)
        self.nops = rep[0]
        return a.text()

def generate(**P):
    g = Gen(P)
    t = g.build()
    return t, g

if __name__ == "__main__":
    P = {}
    out = "parallel_sum__gqa_block_cached__glu_gated_bilinear__decode.s"
    for x in sys.argv[1:]:
        k, v = x.split("=")
        if k == "out": out = v
        else: P[k] = int(v)
    t, g = generate(**P)
    open(out, "w").write(t)
    print("wrote", out, "nops", g.nops, "stamps", g.stamp_names)
```
